```python
import torch

def _softmax(x, axis=-1):
    return torch.softmax(x, dim=axis)
def _gelu(x):
    return torch.nn.functional.gelu(x, approximate="tanh")
def _silu(x):
    return torch.nn.functional.silu(x)
def _sigmoid(x):
    return torch.sigmoid(x)
def _layernorm(x, axis=-1, eps=1e-5):
    m = x.mean(dim=axis, keepdim=True)
    v = x.var(dim=axis, keepdim=True, unbiased=False)
    return (x - m) / torch.sqrt(v + eps)
def _scatter_add(tgt, idx, src, axis=0):
    return tgt.clone().index_add_(axis, idx, src)
def _segment_sum(src, seg, n):
    out = torch.zeros((n,) + src.shape[1:], dtype=src.dtype)
    return out.index_add_(0, seg, src)
def _pad(x, pw):
    flat = tuple(v for pair in reversed(pw) for v in pair)
    return torch.nn.functional.pad(x, flat)

kernel_name = 'sequential_preLN__mha_block__dense_activation_silu__prompt'

def setup_inputs():

    _w = (lambda a: (lambda t: t.to(torch.bfloat16) if t.is_floating_point() else t)(torch.as_tensor(a)))
    def _A_setup():
        B, S, D, H = 1, 2048, 640, 32
        return {
            "x": _w((lambda *s: torch.randn(*s, dtype=torch.bfloat16) * 0.05)(B, S, D)),
            "wqkv": _w((lambda *s: torch.randn(*s, dtype=torch.bfloat16) * 0.05)(D, 3 * D)),
            "wo": _w((lambda *s: torch.randn(*s, dtype=torch.bfloat16) * 0.05)(D, D)),
        }
    _A_in = _A_setup()

    def _B_setup():
        B, S, D, F = 1, 2048, 640, 1728
        return {
            "x": _w((lambda *s: torch.randn(*s, dtype=torch.bfloat16) * 0.05)(B, S, D)),
            "w1": _w((lambda *s: torch.randn(*s, dtype=torch.bfloat16) * 1.6)(D, F) * (D ** -0.5)),
            "w2": _w((lambda *s: torch.randn(*s, dtype=torch.bfloat16) * 0.2)(F, D) * (F ** -0.5)),
        }
    _B_in = _B_setup()

    return {
        "A_x": _A_in["x"],
        "A_wqkv": _A_in["wqkv"],
        "A_wo": _A_in["wo"],
        "B_x": _B_in["x"],
        "B_w1": _B_in["w1"],
        "B_w2": _B_in["w2"],
    }

def reference(A_x, A_wqkv, A_wo, B_x, B_w1, B_w2):
    def _A_ref(x, wqkv, wo):
        B, S, D = x.shape
        H = 32
        Dh = D // H
        qkv = (lambda x, *d: x.permute(*d))((x @ wqkv).reshape(B, S, 3, H, Dh), 2, 0, 3, 1, 4)
        q, k, v = qkv[0], qkv[1], qkv[2]
        scores = torch.einsum("bhqd,bhkd->bhqk", q, k) * (Dh ** -0.5)
        p = _softmax(scores, axis=-1)
        o = torch.einsum("bhqk,bhkd->bhqd", p, v)
        return (lambda x, *d: x.permute(*d))(o, 0, 2, 1, 3).reshape(B, S, D) @ wo

    def _B_ref(x, w1, w2):
        h = torch.einsum("bsd,df->bsf", x, w1)
        h = _silu(h)
        out = torch.einsum("bsf,fd->bsd", h, w2)
        return out

    x = A_x
    h = x + _A_ref(_layernorm(x, axis=-1), A_wqkv, A_wo)
    h2 = h + _B_ref(_layernorm(h, axis=-1), B_w1, B_w2)
    return h2
```

```python
class A:
    def __init__(self):
        self.l = []
    def __call__(self, s):
        for x in s.strip("\n").split("\n"):
            x = x.rstrip()
            if not x.strip():
                continue
            t = x.strip()
            if t.endswith(":") or t.startswith("."):
                self.l.append(t)
            else:
                self.l.append("    " + t)
        return self
    def text(self):
        return "\n".join(self.l) + "\n"

def v(a, n=1):
    return f"v{a}" if n == 1 else f"v[{a}:{a+n-1}]"
def s(a, n=1):
    return f"s{a}" if n == 1 else f"s[{a}:{a+n-1}]"

def srd(A_, d, b, nbytes):
    A_(f"s_mov_b32 s{d}, s{b}\ns_mov_b32 s{d+1}, s{b+1}\ns_mov_b32 s{d+2}, {nbytes}\ns_mov_b32 s{d+3}, 0x00020000")

def srd_off(A_, d, b, off, nbytes):
    A_(f"s_add_u32 s{d}, s{b}, {off}\ns_addc_u32 s{d+1}, s{b+1}, 0\ns_mov_b32 s{d+2}, {nbytes}\ns_mov_b32 s{d+3}, 0x00020000")

def kernel_head(name):
    return f""".globl {name}
.p2align 8
.type {name},@function
{name}:
"""
def kernel_desc(name, vgpr, sgpr=96, accum=None):
    acc = accum if accum is not None else (vgpr + 3) // 4 * 4
    return f""".p2align 6
.amdhsa_kernel {name}
  .amdhsa_next_free_vgpr {vgpr}
  .amdhsa_next_free_sgpr {sgpr}
  .amdhsa_accum_offset {acc}
  .amdhsa_group_segment_fixed_size 0
  .amdhsa_kernarg_size 72
  .amdhsa_user_sgpr_count 2
  .amdhsa_user_sgpr_kernarg_segment_ptr 1
  .amdhsa_system_sgpr_workgroup_id_x 1
.end_amdhsa_kernel
"""
```

```python
QK_OFF   = 0x000000
QK_SIZE  = 160*32768
VT_OFF   = 0x500000
VT_SIZE  = 256*10240
O_OFF    = 0x780000
O_SIZE   = 128*20480
H_OFF    = 0xA00000
H_SIZE   = 64*40960
HH_OFF   = 0xC80000
HH_SIZE  = 128*55296
WOF_OFF  = 0x1340000
WOF_SIZE = 8*20*5*1024
W2F_OFF  = 0x1410000
W2F_SIZE = 8*54*5*1024
ST_OFF   = 0x1630000
ST_SIZE  = 2048*64
QSCALE = 1.4426950408889634/(20.0**0.5)
import struct
def f32hex(x): return "0x%08x" % struct.unpack("<I", struct.pack("<f", x))[0]
```

```python
from asmlib import *
from layout import *

def gen_p1(name="p1_kernel"):
    a = A()
    a(kernel_head(name))
    NST = 10
    a(f"""
    s_cmp_ge_u32 s2, 256
    s_cbranch_scc1 L1_end
    s_load_dwordx4 s[4:7], s[0:1], 0
    s_load_dwordx2 s[8:9], s[0:1], 64
    s_and_b32 s20, s2, 7
    s_lshr_b32 s21, s2, 3
    s_and_b32 s22, s20, 3
    s_lshl_b32 s22, s22, 2
    s_and_b32 s23, s21, 3
    s_add_u32 s22, s22, s23
    s_lshr_b32 s23, s20, 2
    s_lshl_b32 s23, s23, 3
    s_lshr_b32 s24, s21, 2
    s_add_u32 s23, s23, s24
    s_cmp_ge_u32 s23, 15
    s_cbranch_scc1 L1_end
    v_lshrrev_b32 v1, 6, v0
    v_and_b32 v2, 63, v0               ; lane
    v_readfirstlane_b32 s25, v1        ; wave
    v_and_b32 v3, 31, v2               ; l&31
    v_lshrrev_b32 v4, 5, v2            ; g
    s_and_b32 s26, s25, 3              ; w&3
    """)
    a(f"""
    s_lshl_b32 s27, s26, 5
    v_add_u32 v5, s27, v3
    v_bfe_u32 v6, v5, 1, 3             ; (token>>1)&7
    v_xor_b32 v6, v6, v4               ; ^g
    v_lshlrev_b32 v7, 7, v5            ; token*128
    """)
    for st in range(4):
        a(f"v_xor_b32 v12, {2*st}, v6\nv_lshl_add_u32 v{8+st}, v12, 4, v7")
    a(f"""
    s_mov_b32 s28, 0x1ffff
    s_cmp_ge_u32 s25, 4
    s_cbranch_scc1 L1_loader
    """)
    ACC = 64; CS = 60; SEL = 56; XB = [16, 20]; WB = [24, 40]; WA = 12
    a(f"""
    v_bfe_u32 v5, v2, 2, 2             ; r
    v_lshl_add_u32 v6, v4, 3, v5       ; 8g+r
    v_lshlrev_b32 v6, 7, v6            ; *128
    v_bfe_u32 v7, v2, 4, 1             ; jn
    v_lshl_add_u32 v6, v7, 5, v6
    v_and_b32 v7, 3, v2
    v_lshl_add_u32 v6, v7, 3, v6       ; + c*8
    v_lshrrev_b32 v5, 1, v5            ; r>>1
    """)
    for i in range(4):
        a(f"""
        s_add_u32 s30, s26, {i}
        s_and_b32 s{40+i}, s30, 3
        s_and_b32 s31, s{40+i}, 1
        s_lshr_b32 s30, s{40+i}, 1
        s_lshl_b32 s30, s30, 13
        s_add_u32 s30, s30, 16384
        v_xor_b32 v7, s31, v5
        v_lshl_add_u32 v7, v7, 6, v6
        v_add_u32 v{WA+i}, s30, v7
        """)
    a(f"""
    v_and_b32 v5, 15, v2
    v_bfe_u32 v6, v2, 4, 1
    v_cmp_eq_u32 vcc, v5, v6
    v_mov_b32 v7, 0x3f803f80
    s_nop 0
    v_cndmask_b32 v{SEL}, 0, v7, vcc
    v_cndmask_b32 v{SEL+1}, 0, v7, vcc
    v_cndmask_b32 v{SEL+2}, 0, v7, vcc
    v_cndmask_b32 v{SEL+3}, 0, v7, vcc
    """)
    for i in range(64): a(f"v_mov_b32 v{ACC+i}, 0")
    for i in range(4): a(f"v_mov_b32 v{CS+i}, 0\nv_mov_b32 v{XB[1]+i}, 0")
    for i in range(16): a(f"v_mov_b32 v{WB[1]+i}, 0")
    a(f"s_mov_b32 s29, {NST}\ns_cmp_ge_u32 s23, 10\ns_cbranch_scc1 L1_vloop")

    def reads(st, buf):
        r = [f"ds_read_b128 {v(XB[buf],4)}, v{8+st}"]
        for i in range(4):
            for hf in range(2):
                r.append(f"ds_read_b64_tr_b16 {v(WB[buf]+4*i+2*hf,2)}, v{WA+i} offset:{st*2048+hf*512}")
        return r
    def mfmas(buf, vmode):
        m = []
        for i in range(4):
            w = v(WB[buf]+4*i, 4); x = v(XB[buf], 4); c = v(ACC+16*i, 16)
            m.append(f"v_mfma_f32_32x32x16_bf16 {c}, {x}, {w}, {c}" if vmode else f"v_mfma_f32_32x32x16_bf16 {c}, {w}, {x}, {c}")
        m.append(f"v_mfma_f32_16x16x32_bf16 {v(CS,4)}, {v(SEL,4)}, {v(WB[buf],4)}, {v(CS,4)}")
        return m
    def group(st, vmode, extra=()):
        buf = st % 2
        r = reads(st, buf); m = mfmas(1-buf, vmode); e = list(extra)
        out = r[0:3] + [m[0]] + r[3:6] + [m[1]] + r[6:9] + [m[2]] + e[:len(e)//2] + [m[3]] + e[len(e)//2:] + [m[4]]
        return out
    def loop(lbl, vmode):
        a(f".p2align 3\n{lbl}:")
        for st in range(4):
            a("s_waitcnt lgkmcnt(0)")
            if st == 0: a("s_barrier")
            ex = []
            if st == 3:
                for r_ in list(range(8, 12)) + list(range(WA, WA+4)):
                    ex += [f"v_add_u32 v{r_}, 0x8000, v{r_}", f"v_and_b32 v{r_}, s28, v{r_}"]
            for x in group(st, vmode, ex): a(x)
        a(f"s_sub_u32 s29, s29, 1\ns_cmp_lg_u32 s29, 0\ns_cbranch_scc1 {lbl}")
        a("s_waitcnt lgkmcnt(0)")
        ms = mfmas(1, vmode)
        a(ms[4])
        for x in ms[:4]: a(x)
    def tail_common(vmode):
        a(f"""
        s_lshl_b32 s30, s40, 7
        s_add_u32 s30, s30, {131072+1024}
        v_lshl_add_u32 v5, v2, 2, s30
        s_mov_b64 exec, 0xffff
        s_nop 3
        ds_write_b32 v5, v{CS}
        ds_write_b32 v5, v{CS+1} offset:64
        s_mov_b64 exec, -1
        s_waitcnt lgkmcnt(0)
        s_barrier
        s_lshl_b32 s30, s26, 7
        s_add_u32 s30, s30, 131072
        v_lshl_add_u32 v5, v3, 2, s30
        ds_read_b32 v16, v5                 ; -mean
        ds_read_b32 v18, v5 offset:512      ; rstd
        """)
        for i in range(4):
            a(f"s_lshl_b32 s30, s{40+i}, 7\ns_add_u32 s30, s30, {131072+1024}\nv_lshl_add_u32 v6, v3, 2, s30\nds_read_b32 v{24+i}, v6")
        if vmode:
            a(f"s_lshl_b32 s30, s26, 7\ns_add_u32 s30, s30, {131072+512}\nv_lshl_add_u32 v6, v4, 4, s30")
            for q in range(4):
                a(f"ds_read_b128 {v(40+4*q,4)}, v6 offset:{32*q}")
        a(f"""
        v_cmp_gt_u32 vcc, 32, v2
        s_waitcnt lgkmcnt(0)
        v_cvt_pk_bf16_f32 v20, v16, v16
        v_and_b32 v17, 0xffff0000, v20
        v_sub_f32 v17, v16, v17
        v_cvt_pk_bf16_f32 v21, v17, v17
        v_cndmask_b32 v20, 0, v20, vcc
        v_cndmask_b32 v21, 0, v21, vcc
        """)
        for i in range(4):
            a(f"""
            v_cvt_pk_bf16_f32 v5, v{24+i}, v{24+i}
            v_and_b32 v5, 0xffff0000, v5
            v_sub_f32 v6, v{24+i}, v5
            v_cvt_pk_bf16_f32 v{28+2*i}, v5, v6
            v_mov_b32 v{29+2*i}, v{28+2*i}
            """)
        a("s_nop 1")
        for i in range(4):
            c = v(ACC+16*i, 16); w = v(28+2*i, 2); x = v(20, 2)
            a(f"v_mfma_f32_32x32x8_bf16 {c}, {x}, {w}, {c}" if vmode else f"v_mfma_f32_32x32x8_bf16 {c}, {w}, {x}, {c}")
    def stores(vmode):
        for i in range(4):
            c = ACC + 16*i
            for q in range(8):
                if vmode: a(f"v_pk_mul_f32 {v(c+2*q,2)}, {v(c+2*q,2)}, {v(40+2*q,2)}")
                else:     a(f"v_pk_mul_f32 {v(c+2*q,2)}, {v(c+2*q,2)}, v[18:19] op_sel_hi:[1,0]")
            P = 24 + 8*(i % 2)
            for q in range(8):
                a(f"v_cvt_pk_bf16_f32 v{P+q}, v{c+2*q}, v{c+2*q+1}")
            if vmode: a(f"s_lshl_b32 s30, s{40+i}, 9\ns_add_u32 s30, s30, s32\ns_add_u32 s31, s30, 20480")
            else:     a(f"s_lshl_b32 s30, s{40+i}, 17\ns_add_u32 s30, s30, s32\ns_add_u32 s31, s30, 65536")
            a(f"""
            v_permlane32_swap_b32 v{P}, v{P+2}
            v_permlane32_swap_b32 v{P+1}, v{P+3}
            v_permlane32_swap_b32 v{P+4}, v{P+6}
            v_permlane32_swap_b32 v{P+5}, v{P+7}
            buffer_store_dwordx4 {v(P,4)}, v7, s[12:15], s30 offen
            buffer_store_dwordx4 {v(P+4,4)}, v7, s[12:15], s31 offen
            """)
    loop("L1_qloop", False)
    tail_common(False)
    srd_off(a, 12, 8, QK_OFF, QK_SIZE)
    a(f"""
    s_mov_b32 s30, 1.0
    s_cmp_lt_u32 s23, 5
    s_cselect_b32 s30, {f32hex(QSCALE)}, s30
    v_mul_f32 v18, s30, v18
    s_lshl_b32 s30, s22, 7
    s_lshl_b32 s31, s26, 5
    s_add_u32 s30, s30, s31
    v_add_u32 v7, s30, v3
    v_lshlrev_b32 v7, 4, v7
    v_lshl_add_u32 v7, v4, 15, v7
    s_lshl_b32 s32, s23, 19
    s_nop 2
    """)
    stores(False)
    a("s_endpgm")
    loop("L1_vloop", True)
    tail_common(True)
    srd_off(a, 12, 8, VT_OFF, VT_SIZE)
    a(f"""
    v_mul_u32_u24 v7, 10240, v4
    v_lshl_add_u32 v7, v3, 4, v7
    s_lshl_b32 s30, s22, 4
    s_lshl_b32 s31, s26, 2
    s_add_u32 s30, s30, s31
    s_mul_i32 s30, s30, 10240
    s_sub_u32 s31, s23, 10
    s_lshl_b32 s31, s31, 11
    s_add_u32 s32, s30, s31
    s_nop 4
    """)
    stores(True)
    a("s_endpgm")
    a("L1_loader:")
    a(f"""
    v_lshrrev_b32 v5, 3, v2            ; l>>3
    v_and_b32 v6, 7, v2                ; pos
    s_lshl_b32 s30, s26, 5
    v_add_u32 v7, s30, v5
    v_mul_u32_u24 v7, 1280, v7
    v_lshrrev_b32 v12, 4, v2           ; l>>4
    v_xor_b32 v12, v12, v6
    v_lshl_add_u32 v16, v12, 4, v7
    v_xor_b32 v12, 4, v12
    v_lshl_add_u32 v17, v12, 4, v7
    v_add_u32 v17, {10240-1024}, v17
    v_add_u32 v18, {2*(10240-1024)}, v16
    v_add_u32 v19, {2*(10240-1024)}, v17
    s_lshr_b32 s30, s26, 1
    s_lshl_b32 s30, s30, 5
    v_add_u32 v7, s30, v5              ; k row (i=0)
    v_mul_u32_u24 v7, 3840, v7
    v_bfe_u32 v12, v2, 4, 1
    v_lshlrev_b32 v12, 2, v12
    v_xor_b32 v12, v12, v6
    v_lshl_add_u32 v20, v12, 4, v7
    s_and_b32 s31, s26, 1
    s_lshl_b32 s33, s31, 7
    v_add_u32 v20, s33, v20
    v_add_u32 v21, {30720-1024}, v20
    v_add_u32 v22, {2*(30720-1024)}, v20
    v_add_u32 v23, {3*(30720-1024)}, v20
    s_lshl_b32 s34, s26, 12
    s_lshl_b32 s35, s31, 13
    s_lshl_b32 s30, s30, 7
    s_add_u32 s35, s35, s30
    s_add_u32 s35, s35, 16384
    s_mul_i32 s30, s22, 163840
    s_lshl_b32 s31, s23, 8
    s_sub_u32 s33, {640*3840}, s31
    s_mov_b32 s36, 0                   ; x soffset
    s_mov_b32 s37, 0                   ; w soffset
    s_waitcnt lgkmcnt(0)
    s_add_u32 s12, s4, s30
    s_addc_u32 s13, s5, 0
    s_mov_b32 s14, 163840
    s_mov_b32 s15, 0x00020000
    s_add_u32 s16, s6, s31
    s_addc_u32 s17, s7, 0
    s_mov_b32 s18, s33
    s_mov_b32 s19, 0x00020000
    """)
    def dma(which, i):
        if which == 'x': return f"buffer_load_dwordx4 v{16+i}, s[12:15], s36 offen offset:{1024*i} lds"
        return f"buffer_load_dwordx4 v{20+i}, s[16:19], s37 offen offset:{1024*i} lds"
    def adv():
        return [f"s_add_u32 s36, s36, 128", f"s_add_u32 s37, s37, {64*3840}",
                "s_add_u32 s34, s34, 0x8000", "s_and_b32 s34, s34, s28", "s_add_u32 s35, s35, 0x8000", "s_and_b32 s35, s35, s28"]
    for st in range(3):
        a("s_mov_b32 m0, s34\ns_nop 0")
        for i in range(4): a(dma('x', i))
        a("s_mov_b32 m0, s35\ns_nop 0")
        for i in range(4): a(dma('w', i))
        for x in adv(): a(x)
    a(f"v_mov_b32 v24, 0\nv_mov_b32 v25, 0\nv_mov_b32 v26, 0\nv_mov_b32 v27, 0\ns_mov_b32 s29, {NST}\ns_mov_b32 s38, 0xffff0000")
    a(".p2align 3\nL1_lloop:")
    a("s_cmp_gt_u32 s29, 3\ns_cselect_b32 s14, s14, 0\ns_cselect_b32 s18, s18, 0")
    a("s_waitcnt vmcnt(16) lgkmcnt(0)\ns_barrier")
    for st in range(4): a(f"ds_read_b128 {v(32+4*st,4)}, v{8+st}")
    def stat(rg):
        return [f"v_and_b32 v28, s38, v{rg}", f"v_lshlrev_b32 v29, 16, v{rg}", "v_add_f32 v24, v24, v28", "v_add_f32 v25, v25, v29",
                "v_fmac_f32 v26, v28, v28", "v_fmac_f32 v27, v29, v29"]
    a("s_mov_b32 m0, s34")
    for r_ in range(8, 12): a(f"v_add_u32 v{r_}, 0x8000, v{r_}\nv_and_b32 v{r_}, s28, v{r_}")
    for i in range(8):
        if i == 4: a("s_mov_b32 m0, s35\ns_nop 0")
        a(dma('x', i) if i < 4 else dma('w', i-4))
        if i % 2 == 0: a(f"s_waitcnt lgkmcnt({3-i//2})")
        for x in stat(32+2*i) + stat(33+2*i): a(x)
    for x in adv(): a(x)
    a("s_sub_u32 s29, s29, 1\ns_cmp_lg_u32 s29, 0\ns_cbranch_scc1 L1_lloop")
    a(f"""
    v_add_f32 v24, v24, v25
    v_add_f32 v26, v26, v27
    v_mov_b32 v25, v24
    v_mov_b32 v27, v26
    s_nop 1
    v_permlane32_swap_b32 v24, v25
    v_permlane32_swap_b32 v26, v27
    v_add_f32 v24, v24, v25
    v_add_f32 v26, v26, v27
    v_mul_f32 v24, {f32hex(-1.0/640)}, v24      ; -mean
    v_mul_f32 v26, {f32hex(1.0/640)}, v26
    v_fma_f32 v26, -v24, v24, v26
    v_max_f32 v26, 0, v26
    v_add_f32 v26, {f32hex(1e-5)}, v26
    v_rsq_f32 v26, v26
    s_lshl_b32 s30, s26, 7
    s_add_u32 s30, s30, 131072
    v_lshl_add_u32 v5, v3, 2, s30
    ds_write_b32 v5, v24
    ds_write_b32 v5, v26 offset:512
    s_waitcnt lgkmcnt(0)
    s_barrier
    L1_end:
    s_endpgm
    """)
    return a.text(), kernel_desc(name, 128), f"; @launch kernel={name} grid=(256,1,1) block=(512,1,1) lds={131072+1536}"
```

```python
import sys, importlib
from asmlib import *
import p1
HDR = open("sequential_preLN__mha_block__dense_activation_silu__prompt.s.ref").read().split("; Override")[0]
def build(parts):
    out = HDR + "\n".join(p[2] for p in parts) + "\n"
    out += '.amdgcn_target "amdgcn-amd-amdhsa--gfx950"\n.text\n'
    out += "".join(p[0] for p in parts)
    out += '.section .rodata,"a"\n' + "".join(p[1] for p in parts)
    return out
def all_parts():
    parts = [p1.gen_p1()]
    for m, f in (("p2", "gen_p2"), ("p3", "gen_p3"), ("p4", "gen_p4"), ("p3", "gen_p5")):
        try:
            mod = importlib.import_module(m)
        except ImportError:
            continue
        if hasattr(mod, f): parts.append(getattr(mod, f)())
    return parts
if __name__ == "__main__":
    dst = sys.argv[1] if len(sys.argv) > 1 else "sequential_preLN__mha_block__dense_activation_silu__prompt.s"
    open(dst, "w").write(build(all_parts()))
    print("wrote", dst)
```

```python
class A:
    def __init__(self):
        self.l = []
    def __call__(self, s):
        for x in s.strip("\n").split("\n"):
            x = x.rstrip()
            if not x.strip():
                continue
            t = x.strip()
            if t.endswith(":") or t.startswith("."):
                self.l.append(t)
            else:
                self.l.append("    " + t)
        return self
    def text(self):
        return "\n".join(self.l) + "\n"

def v(a, n=1):
    return f"v{a}" if n == 1 else f"v[{a}:{a+n-1}]"
def s(a, n=1):
    return f"s{a}" if n == 1 else f"s[{a}:{a+n-1}]"

def srd(A_, d, b, nbytes):
    A_(f"s_mov_b32 s{d}, s{b}\ns_mov_b32 s{d+1}, s{b+1}\ns_mov_b32 s{d+2}, {nbytes}\ns_mov_b32 s{d+3}, 0x00020000")

def srd_off(A_, d, b, off, nbytes):
    A_(f"s_add_u32 s{d}, s{b}, {off}\ns_addc_u32 s{d+1}, s{b+1}, 0\ns_mov_b32 s{d+2}, {nbytes}\ns_mov_b32 s{d+3}, 0x00020000")

def kernel_head(name):
    return f""".globl {name}
.p2align 8
.type {name},@function
{name}:
"""
def kernel_desc(name, vgpr, sgpr=96, accum=None):
    import os
    if os.environ.get("KPROF"): vgpr = 256; sgpr = 102
    acc = accum if accum is not None else (vgpr + 3) // 4 * 4
    return f""".p2align 6
.amdhsa_kernel {name}
  .amdhsa_next_free_vgpr {vgpr}
  .amdhsa_next_free_sgpr {sgpr}
  .amdhsa_accum_offset {acc}
  .amdhsa_group_segment_fixed_size 0
  .amdhsa_kernarg_size 72
  .amdhsa_user_sgpr_count 2
  .amdhsa_user_sgpr_kernarg_segment_ptr 1
  .amdhsa_system_sgpr_workgroup_id_x 1
.end_amdhsa_kernel
"""

import os
PROF = bool(os.environ.get("KPROF"))
PROF_OFF = 0x2000000
def stamp(A_, idx):
    if not PROF: return
    A_(f"""
    s_memtime s[96:97]
    s_memrealtime s[98:99]
    s_waitcnt lgkmcnt(0)
    s_mov_b32 s{78+2*idx}, s96
    s_mov_b32 s{79+2*idx}, s98
    """)
def stamp_flush(A_, kidx, n, wsreg=8, wavereg=25):
    if not PROF: return
    A_(f"""
    s_mov_b64 exec, -1
    s_lshl_b32 s96, s2, 10
    s_lshl_b32 s97, s{wavereg}, 7
    s_add_u32 s96, s96, s97
    s_add_u32 s96, s96, {PROF_OFF + kidx*0x40000}
    v_mov_b32 v254, s96
    """)
    for i in range(n):
        A_(f"v_mov_b32 v252, s{78+2*i}\nv_mov_b32 v253, s{79+2*i}\nglobal_store_dwordx2 v254, v[252:253], s[{wsreg}:{wsreg+1}] offset:{8*i}\ns_nop 1")
```

```python
from asmlib import *
from layout import *

def gen_p1(name="p1_kernel"):
    a = A()
    a(kernel_head(name))
    NST = 10
    a(f"""
    s_cmp_ge_u32 s2, 256
    s_cbranch_scc1 L1_end
    s_load_dwordx4 s[4:7], s[0:1], 0
    s_load_dwordx2 s[8:9], s[0:1], 64
    s_and_b32 s20, s2, 7
    s_lshr_b32 s21, s2, 3
    s_and_b32 s22, s20, 3
    s_lshl_b32 s22, s22, 2
    s_and_b32 s23, s21, 3
    s_add_u32 s22, s22, s23
    s_lshr_b32 s23, s20, 2
    s_lshl_b32 s23, s23, 3
    s_lshr_b32 s24, s21, 2
    s_add_u32 s23, s23, s24
    s_cmp_ge_u32 s23, 15
    s_cbranch_scc1 L1_end
    v_lshrrev_b32 v1, 6, v0
    v_and_b32 v2, 63, v0               ; lane
    v_readfirstlane_b32 s25, v1        ; wave
    v_and_b32 v3, 31, v2               ; l&31
    v_lshrrev_b32 v4, 5, v2            ; g
    s_and_b32 s26, s25, 3              ; w&3
    """)
    a(f"""
    s_lshl_b32 s27, s26, 5
    v_add_u32 v5, s27, v3
    v_bfe_u32 v6, v5, 1, 3             ; (token>>1)&7
    v_xor_b32 v6, v6, v4               ; ^g
    v_lshlrev_b32 v7, 7, v5            ; token*128
    """)
    for st in range(4):
        a(f"v_xor_b32 v12, {2*st}, v6\nv_lshl_add_u32 v{8+st}, v12, 4, v7")
    a(f"""
    s_mov_b32 s28, 0x1ffff
    s_cmp_ge_u32 s25, 4
    s_cbranch_scc1 L1_loader
    """)
    ACC = 64; CS = 60; SEL = 56; XB = [16, 20]; WB = [24, 40]; WA = 12
    a(f"""
    v_bfe_u32 v5, v2, 2, 2             ; r
    v_lshl_add_u32 v6, v4, 3, v5       ; 8g+r
    v_lshlrev_b32 v6, 7, v6            ; *128
    v_bfe_u32 v7, v2, 4, 1             ; jn
    v_lshl_add_u32 v6, v7, 5, v6
    v_and_b32 v7, 3, v2
    v_lshl_add_u32 v6, v7, 3, v6       ; + c*8
    v_lshrrev_b32 v5, 1, v5            ; r>>1
    """)
    for i in range(4):
        a(f"""
        s_add_u32 s30, s26, {i}
        s_and_b32 s{40+i}, s30, 3
        s_and_b32 s31, s{40+i}, 1
        s_lshr_b32 s30, s{40+i}, 1
        s_lshl_b32 s30, s30, 13
        s_add_u32 s30, s30, 16384
        v_xor_b32 v7, s31, v5
        v_lshl_add_u32 v7, v7, 6, v6
        v_add_u32 v{WA+i}, s30, v7
        """)
    a(f"""
    v_and_b32 v5, 15, v2
    v_bfe_u32 v6, v2, 4, 1
    v_cmp_eq_u32 vcc, v5, v6
    v_mov_b32 v7, 0x3f803f80
    s_nop 0
    v_cndmask_b32 v{SEL}, 0, v7, vcc
    v_cndmask_b32 v{SEL+1}, 0, v7, vcc
    v_cndmask_b32 v{SEL+2}, 0, v7, vcc
    v_cndmask_b32 v{SEL+3}, 0, v7, vcc
    """)
    for i in range(64): a(f"v_mov_b32 v{ACC+i}, 0")
    for i in range(4): a(f"v_mov_b32 v{CS+i}, 0\nv_mov_b32 v{XB[1]+i}, 0")
    for i in range(16): a(f"v_mov_b32 v{WB[1]+i}, 0")
    stamp(a, 0)
    a(f"s_mov_b32 s29, {NST}\ns_cmp_ge_u32 s23, 10\ns_cbranch_scc1 L1_vloop")

    def reads(st, buf):
        r = [f"ds_read_b128 {v(XB[buf],4)}, v{8+st}"]
        for i in range(4):
            for hf in range(2):
                r.append(f"ds_read_b64_tr_b16 {v(WB[buf]+4*i+2*hf,2)}, v{WA+i} offset:{st*2048+hf*512}")
        return r
    def mfmas(buf, vmode):
        m = []
        for i in range(4):
            w = v(WB[buf]+4*i, 4); x = v(XB[buf], 4); c = v(ACC+16*i, 16)
            m.append(f"v_mfma_f32_32x32x16_bf16 {c}, {x}, {w}, {c}" if vmode else f"v_mfma_f32_32x32x16_bf16 {c}, {w}, {x}, {c}")
        m.append(f"v_mfma_f32_16x16x32_bf16 {v(CS,4)}, {v(SEL,4)}, {v(WB[buf],4)}, {v(CS,4)}")
        return m
    def group(st, vmode, extra=()):
        buf = st % 2
        r = reads(st, buf); m = mfmas(1-buf, vmode); e = list(extra)
        out = r[0:3] + [m[0]] + r[3:6] + [m[1]] + r[6:9] + [m[2]] + e[:len(e)//2] + [m[3]] + e[len(e)//2:] + [m[4]]
        return out
    def loop(lbl, vmode):
        a(f".p2align 3\n{lbl}:")
        for st in range(4):
            a("s_waitcnt lgkmcnt(0)")
            if st == 0:
                a("s_barrier")
                if PROF:
                    a(f"s_cmp_lg_u32 s29, {NST}\ns_cbranch_scc1 {lbl}_ns"); stamp(a, 1); a(f"{lbl}_ns:")
            ex = []
            if st == 3:
                for r_ in list(range(8, 12)) + list(range(WA, WA+4)):
                    ex += [f"v_add_u32 v{r_}, 0x8000, v{r_}", f"v_and_b32 v{r_}, s28, v{r_}"]
            for x in group(st, vmode, ex): a(x)
        a(f"s_sub_u32 s29, s29, 1\ns_cmp_lg_u32 s29, 0\ns_cbranch_scc1 {lbl}")
        a("s_waitcnt lgkmcnt(0)")
        stamp(a, 2)
        ms = mfmas(1, vmode)
        a(ms[4])
        for x in ms[:4]: a(x)
    def tail_common(vmode):
        a(f"""
        s_lshl_b32 s30, s40, 7
        s_add_u32 s30, s30, {131072+1024}
        v_lshl_add_u32 v5, v2, 2, s30
        s_mov_b64 exec, 0xffff
        s_nop 3
        ds_write_b32 v5, v{CS}
        ds_write_b32 v5, v{CS+1} offset:64
        s_mov_b64 exec, -1
        s_waitcnt lgkmcnt(0)
        s_barrier
        s_lshl_b32 s30, s26, 7
        s_add_u32 s30, s30, 131072
        v_lshl_add_u32 v5, v3, 2, s30
        ds_read_b32 v16, v5                 ; -mean
        ds_read_b32 v18, v5 offset:512      ; rstd
        """)
        for i in range(4):
            a(f"s_lshl_b32 s30, s{40+i}, 7\ns_add_u32 s30, s30, {131072+1024}\nv_lshl_add_u32 v6, v3, 2, s30\nds_read_b32 v{24+i}, v6")
        if vmode:
            a(f"s_lshl_b32 s30, s26, 7\ns_add_u32 s30, s30, {131072+512}\nv_lshl_add_u32 v6, v4, 4, s30")
            for q in range(4):
                a(f"ds_read_b128 {v(40+4*q,4)}, v6 offset:{32*q}")
        a(f"""
        v_cmp_gt_u32 vcc, 32, v2
        s_waitcnt lgkmcnt(0)
        v_cvt_pk_bf16_f32 v20, v16, v16
        v_and_b32 v17, 0xffff0000, v20
        v_sub_f32 v17, v16, v17
        v_cvt_pk_bf16_f32 v21, v17, v17
        v_cndmask_b32 v20, 0, v20, vcc
        v_cndmask_b32 v21, 0, v21, vcc
        """)
        for i in range(4):
            a(f"""
            v_cvt_pk_bf16_f32 v5, v{24+i}, v{24+i}
            v_and_b32 v5, 0xffff0000, v5
            v_sub_f32 v6, v{24+i}, v5
            v_cvt_pk_bf16_f32 v{28+2*i}, v5, v6
            v_mov_b32 v{29+2*i}, v{28+2*i}
            """)
        a("s_nop 1")
        for i in range(4):
            c = v(ACC+16*i, 16); w = v(28+2*i, 2); x = v(20, 2)
            a(f"v_mfma_f32_32x32x8_bf16 {c}, {x}, {w}, {c}" if vmode else f"v_mfma_f32_32x32x8_bf16 {c}, {w}, {x}, {c}")
    def stores(vmode):
        for i in range(4):
            c = ACC + 16*i
            for q in range(8):
                if vmode: a(f"v_pk_mul_f32 {v(c+2*q,2)}, {v(c+2*q,2)}, {v(40+2*q,2)}")
                else:     a(f"v_pk_mul_f32 {v(c+2*q,2)}, {v(c+2*q,2)}, v[18:19] op_sel_hi:[1,0]")
            P = 24 + 8*(i % 2)
            for q in range(8):
                a(f"v_cvt_pk_bf16_f32 v{P+q}, v{c+2*q}, v{c+2*q+1}")
            if vmode: a(f"s_lshl_b32 s30, s{40+i}, 9\ns_add_u32 s30, s30, s32\ns_add_u32 s31, s30, 20480")
            else:     a(f"s_lshl_b32 s30, s{40+i}, 17\ns_add_u32 s30, s30, s32\ns_add_u32 s31, s30, 65536")
            a(f"""
            v_permlane32_swap_b32 v{P}, v{P+2}
            v_permlane32_swap_b32 v{P+1}, v{P+3}
            v_permlane32_swap_b32 v{P+4}, v{P+6}
            v_permlane32_swap_b32 v{P+5}, v{P+7}
            buffer_store_dwordx4 {v(P,4)}, v7, s[12:15], s30 offen
            buffer_store_dwordx4 {v(P+4,4)}, v7, s[12:15], s31 offen
            """)
    loop("L1_qloop", False)
    tail_common(False)
    srd_off(a, 12, 8, QK_OFF, QK_SIZE)
    a(f"""
    s_mov_b32 s30, 1.0
    s_cmp_lt_u32 s23, 5
    s_cselect_b32 s30, {f32hex(QSCALE)}, s30
    v_mul_f32 v18, s30, v18
    s_lshl_b32 s30, s22, 7
    s_lshl_b32 s31, s26, 5
    s_add_u32 s30, s30, s31
    v_add_u32 v7, s30, v3
    v_lshlrev_b32 v7, 4, v7
    v_lshl_add_u32 v7, v4, 15, v7
    s_lshl_b32 s32, s23, 19
    s_nop 2
    """)
    stamp(a, 3)
    stores(False)
    stamp(a, 4)
    if PROF: a("s_waitcnt vmcnt(0)")
    stamp(a, 5)
    stamp_flush(a, 0, 6)
    a("s_endpgm")
    loop("L1_vloop", True)
    tail_common(True)
    srd_off(a, 12, 8, VT_OFF, VT_SIZE)
    a(f"""
    v_mul_u32_u24 v7, 10240, v4
    v_lshl_add_u32 v7, v3, 4, v7
    s_lshl_b32 s30, s22, 4
    s_lshl_b32 s31, s26, 2
    s_add_u32 s30, s30, s31
    s_mul_i32 s30, s30, 10240
    s_sub_u32 s31, s23, 10
    s_lshl_b32 s31, s31, 11
    s_add_u32 s32, s30, s31
    s_nop 4
    """)
    stamp(a, 3)
    stores(True)
    stamp(a, 4)
    if PROF: a("s_waitcnt vmcnt(0)")
    stamp(a, 5)
    stamp_flush(a, 0, 6)
    a("s_endpgm")
    a("L1_loader:")
    a(f"""
    v_lshrrev_b32 v5, 3, v2            ; l>>3
    v_and_b32 v6, 7, v2                ; pos
    s_lshl_b32 s30, s26, 5
    v_add_u32 v7, s30, v5
    v_mul_u32_u24 v7, 1280, v7
    v_lshrrev_b32 v12, 4, v2           ; l>>4
    v_xor_b32 v12, v12, v6
    v_lshl_add_u32 v16, v12, 4, v7
    v_xor_b32 v12, 4, v12
    v_lshl_add_u32 v17, v12, 4, v7
    v_add_u32 v17, {10240-1024}, v17
    v_add_u32 v18, {2*(10240-1024)}, v16
    v_add_u32 v19, {2*(10240-1024)}, v17
    s_lshr_b32 s30, s26, 1
    s_lshl_b32 s30, s30, 5
    v_add_u32 v7, s30, v5              ; k row (i=0)
    v_mul_u32_u24 v7, 3840, v7
    v_bfe_u32 v12, v2, 4, 1
    v_lshlrev_b32 v12, 2, v12
    v_xor_b32 v12, v12, v6
    v_lshl_add_u32 v20, v12, 4, v7
    s_and_b32 s31, s26, 1
    s_lshl_b32 s33, s31, 7
    v_add_u32 v20, s33, v20
    v_add_u32 v21, {30720-1024}, v20
    v_add_u32 v22, {2*(30720-1024)}, v20
    v_add_u32 v23, {3*(30720-1024)}, v20
    s_lshl_b32 s34, s26, 12
    s_lshl_b32 s35, s31, 13
    s_lshl_b32 s30, s30, 7
    s_add_u32 s35, s35, s30
    s_add_u32 s35, s35, 16384
    s_mul_i32 s30, s22, 163840
    s_lshl_b32 s31, s23, 8
    s_sub_u32 s33, {640*3840}, s31
    s_mov_b32 s36, 0                   ; x soffset
    s_mov_b32 s37, 0                   ; w soffset
    s_waitcnt lgkmcnt(0)
    s_add_u32 s12, s4, s30
    s_addc_u32 s13, s5, 0
    s_mov_b32 s14, 163840
    s_mov_b32 s15, 0x00020000
    s_add_u32 s16, s6, s31
    s_addc_u32 s17, s7, 0
    s_mov_b32 s18, s33
    s_mov_b32 s19, 0x00020000
    """)
    def dma(which, i):
        if which == 'x': return f"buffer_load_dwordx4 v{16+i}, s[12:15], s36 offen offset:{1024*i} lds"
        return f"buffer_load_dwordx4 v{20+i}, s[16:19], s37 offen offset:{1024*i} lds"
    def adv():
        return [f"s_add_u32 s36, s36, 128", f"s_add_u32 s37, s37, {64*3840}",
                "s_add_u32 s34, s34, 0x8000", "s_and_b32 s34, s34, s28", "s_add_u32 s35, s35, 0x8000", "s_and_b32 s35, s35, s28"]
    for st in range(3):
        a("s_mov_b32 m0, s34\ns_nop 0")
        for i in range(4): a(dma('x', i))
        a("s_mov_b32 m0, s35\ns_nop 0")
        for i in range(4): a(dma('w', i))
        for x in adv(): a(x)
    a(f"v_mov_b32 v24, 0\nv_mov_b32 v25, 0\nv_mov_b32 v26, 0\nv_mov_b32 v27, 0\ns_mov_b32 s29, {NST}\ns_mov_b32 s38, 0xffff0000")
    a(".p2align 3\nL1_lloop:")
    a("s_cmp_gt_u32 s29, 3\ns_cselect_b32 s14, s14, 0\ns_cselect_b32 s18, s18, 0")
    a("s_waitcnt vmcnt(16) lgkmcnt(0)\ns_barrier")
    for st in range(4): a(f"ds_read_b128 {v(32+4*st,4)}, v{8+st}")
    def stat(rg):
        return [f"v_and_b32 v28, s38, v{rg}", f"v_lshlrev_b32 v29, 16, v{rg}", "v_add_f32 v24, v24, v28", "v_add_f32 v25, v25, v29",
                "v_fmac_f32 v26, v28, v28", "v_fmac_f32 v27, v29, v29"]
    a("s_mov_b32 m0, s34")
    for r_ in range(8, 12): a(f"v_add_u32 v{r_}, 0x8000, v{r_}\nv_and_b32 v{r_}, s28, v{r_}")
    for i in range(8):
        if i == 4: a("s_mov_b32 m0, s35\ns_nop 0")
        a(dma('x', i) if i < 4 else dma('w', i-4))
        if i % 2 == 0: a(f"s_waitcnt lgkmcnt({3-i//2})")
        for x in stat(32+2*i) + stat(33+2*i): a(x)
    for x in adv(): a(x)
    a("s_sub_u32 s29, s29, 1\ns_cmp_lg_u32 s29, 0\ns_cbranch_scc1 L1_lloop")
    a(f"""
    v_add_f32 v24, v24, v25
    v_add_f32 v26, v26, v27
    v_mov_b32 v25, v24
    v_mov_b32 v27, v26
    s_nop 1
    v_permlane32_swap_b32 v24, v25
    v_permlane32_swap_b32 v26, v27
    v_add_f32 v24, v24, v25
    v_add_f32 v26, v26, v27
    v_mul_f32 v24, {f32hex(-1.0/640)}, v24      ; -mean
    v_mul_f32 v26, {f32hex(1.0/640)}, v26
    v_fma_f32 v26, -v24, v24, v26
    v_max_f32 v26, 0, v26
    v_add_f32 v26, {f32hex(1e-5)}, v26
    v_rsq_f32 v26, v26
    s_lshl_b32 s30, s26, 7
    s_add_u32 s30, s30, 131072
    v_lshl_add_u32 v5, v3, 2, s30
    ds_write_b32 v5, v24
    ds_write_b32 v5, v26 offset:512
    s_waitcnt lgkmcnt(0)
    s_barrier
    L1_end:
    s_endpgm
    """)
    return a.text(), kernel_desc(name, 128), f"; @launch kernel={name} grid=(256,1,1) block=(512,1,1) lds={131072+1536}"
```

```python
import gen, sys
from asmlib import *
def empty(name, grid=256):
    return (kernel_head(name)+"    s_endpgm\n", kernel_desc(name, 8, 16), f"; @launch kernel={name} grid=({grid},1,1) block=(64,1,1) lds=0")
P = gen.all_parts()
open("v_base.s","w").write(gen.build(P))
open("v_e1.s","w").write(gen.build(P+[empty("e1_kernel")]))
e=empty("e1_kernel")
t=gen.build(P+[e])
t=t.replace(e[2], "\n".join([e[2]]*4))
open("v_e4.s","w").write(t)
open("v_pre1.s","w").write(gen.build([empty("e1_kernel")]+P))
```
